```python
import torch

def _softmax(x, axis=-1):
    return torch.softmax(x, dim=axis)
def _gelu(x):
    return torch.nn.functional.gelu(x, approximate="tanh")
def _silu(x):
    return torch.nn.functional.silu(x)
def _sigmoid(x):
    return torch.sigmoid(x)
def _layernorm(x, axis=-1, eps=1e-5):
    m = x.mean(dim=axis, keepdim=True)
    v = x.var(dim=axis, keepdim=True, unbiased=False)
    return (x - m) / torch.sqrt(v + eps)
def _scatter_add(tgt, idx, src, axis=0):
    return tgt.clone().index_add_(axis, idx, src)
def _segment_sum(src, seg, n):
    out = torch.zeros((n,) + src.shape[1:], dtype=src.dtype)
    return out.index_add_(0, seg, src)
def _pad(x, pw):
    flat = tuple(v for pair in reversed(pw) for v in pair)
    return torch.nn.functional.pad(x, flat)

kernel_name = 'standalone__self_sup_conv_stem_hubert__speech'

def setup_inputs():

    _w = (lambda a: (lambda t: t.to(torch.bfloat16) if t.is_floating_point() else t)(torch.as_tensor(a)))
    B, T, D, K = 2, 16000, 144, 31
    scale = (1.0 / (K * D)) ** 0.5
    return {
        "x": _w((lambda *s: torch.randn(*s, dtype=torch.bfloat16) * 0.05)(B, T, D)),
        "w": _w((lambda *s: torch.randn(*s, dtype=torch.bfloat16) * 0.05)(K, D, D) * scale),
        "b": _w((lambda *s: torch.randn(*s, dtype=torch.bfloat16) * 0.05)(D) * 0.1),
        "gamma": _w(torch.ones((D,), dtype=float)),
        "beta": _w(torch.zeros((D,), dtype=float)),
    }

def reference(x, w, b, gamma, beta):
    B, T, D = x.shape
    K = w.shape[0]
    s = 2
    L = (T - K) // s + 1
    y = torch.einsum('blc,cd->bld', x[:, 0 : s * L : s, :], w[0])
    for i in range(1, K):
        y = y + torch.einsum('blc,cd->bld', x[:, i : i + s * L : s, :], w[i])
    y = y + b[None, None, :]
    mu = y.mean(1, keepdims=True)
    var = ((y - mu) ** 2).mean(1, keepdims=True)
    yn = (y - mu) / torch.sqrt(var + 1e-5)
    yn = yn * gamma[None, None, :] + beta[None, None, :]
    return _gelu(yn)
```

```python
import re

_REG = re.compile(r"^-?\|?([vas])(\d+)\|?$")
_RNG = re.compile(r"^-?([vas])\[(\d+):(\d+)\]$")
TRANS = ("v_exp_f32", "v_rcp_f32", "v_rsq_f32", "v_log_f32", "v_sqrt_f32")


def regs_of(tok):
    tok = tok.strip()
    m = _REG.match(tok)
    if m:
        return {m.group(1) + m.group(2)}
    m = _RNG.match(tok)
    if m:
        return {m.group(1) + str(i) for i in range(int(m.group(2)), int(m.group(3)) + 1)}
    if tok in ("vcc", "m0", "exec"):
        return {tok}
    return set()


class Op:
    def __init__(self, text, need=None):
        self.text = text
        self.need = list(need or [])
        self.gap = None
        parts = text.split(None, 1)
        mn = self.mn = parts[0]
        rest = parts[1] if len(parts) > 1 else ""
        rest = re.sub(r"\s+(op_sel|op_sel_hi|neg_lo|neg_hi):\[[^\]]*\]", "", rest)
        toks = [t.strip() for t in rest.split(",")] if rest else []
        mods = ""
        if toks:
            last = toks[-1].split(None, 1)
            toks[-1] = last[0]
            mods = last[1] if len(last) > 1 else ""
        R = [regs_of(t) for t in toks]
        allr = set().union(*R) if R else set()
        tail = set().union(*R[1:]) if len(R) > 1 else set()
        self.rd, self.wr = set(), set()
        self.srcc = set()
        self.wide_data = set()
        if text.endswith(":"):
            self.kind = "label"
        elif mn.startswith("v_mfma"):
            self.kind = "mfma"
            self.wr, self.rd = R[0], tail
            self.ab = R[1] | R[2]
            self.srcc = R[3]
        elif mn.startswith("ds_read"):
            self.kind = "dsr"
            self.wr, self.rd = R[0], tail
        elif mn.startswith("ds_"):
            self.kind = "dsw"
            self.rd = allr
        elif mn.startswith(("buffer_load", "global_load")):
            if mods.split() and mods.split()[-1] == "lds":
                self.kind = "dma"
                self.rd = allr | {"m0"}
            else:
                self.kind = "vld"
                self.wr, self.rd = R[0], tail
        elif mn.startswith(("buffer_store", "buffer_atomic", "global_store")):
            self.kind = "vst"
            self.rd = allr
            if mn.endswith(("x3", "x4")):
                self.wide_data = R[0] if mn.startswith("buffer") else R[1]
        elif mn.startswith("v_"):
            self.kind = "valu"
            if "permlane" in mn and "swap" in mn:
                self.wr = self.rd = allr
            else:
                self.wr, self.rd = R[0], tail
                if mn.startswith(("v_fmac", "v_pk_fmac")):
                    self.rd = allr
            self.dpp = "row_" in mods or "quad_perm" in mods
            self.perm = "permlane" in mn
            self.rdlane = mn.startswith(("v_readfirstlane", "v_readlane"))
            self.trans = mn.startswith(TRANS)
        elif mn.startswith(("s_load", "s_memtime", "s_memrealtime")):
            self.kind = "smem"
            self.wr, self.rd = R[0], tail
        elif mn in ("s_barrier",):
            self.kind = "barrier"
        elif mn.startswith(("s_cbranch", "s_branch", "s_endpgm")):
            self.kind = "branch"
        elif mn == "s_waitcnt":
            self.kind = "wait"
        elif mn == "s_nop":
            self.kind = "nop"
            self.states = int(toks[0]) + 1
        elif mn.startswith(("s_cmp", "s_setprio", "s_sleep", "s_bitcmp")):
            self.kind = "salu"
            self.rd = allr
        elif mn.startswith("s_"):
            self.kind = "salu"
            self.wr, self.rd = R[0], tail
            if "saveexec" in mn:
                self.wr = self.wr | {"exec"}
        elif mn.startswith((".", ";")):
            self.kind = "label"
        else:
            raise ValueError("unknown instruction: " + text)


def isv(r):
    return r[0] in "va" and r != "vcc"


def iss(r):
    return r[0] == "s" or r == "vcc"


def required_states(p, c):
    n = 0
    if p.kind == "valu":
        wv = {r for r in p.wr if isv(r)}
        ws = {r for r in p.wr if iss(r)}
        if c.kind == "mfma" and wv & c.rd:
            n = max(n, 2)
        if c.kind == "valu":
            if (c.dpp or c.perm) and wv & (c.rd | c.wr):
                n = max(n, 2)
            if c.rdlane and wv & c.rd:
                n = max(n, 1)
            if p.trans and not c.trans and wv & c.rd:
                n = max(n, 1)
            if ws & c.rd:
                n = max(n, 2)
        if c.kind in ("vld", "vst", "dma") and ws & c.rd:
            n = max(n, 5)
        if c.kind == "salu" and ws & c.rd:
            n = max(n, 1)
    elif p.kind == "mfma":
        if c.kind == "mfma":
            if p.wr & c.ab:
                n = max(n, 8)
            if p.wr & c.srcc and p.wr != c.srcc:
                n = max(n, 6)
        elif c.kind in ("valu", "vld", "vst", "dsr", "dsw", "dma"):
            if p.wr & (c.rd | c.wr):
                n = max(n, 8)
            if p.srcc & c.wr:
                n = max(n, 3)
    elif p.kind == "vst":
        if p.wide_data & c.wr:
            n = max(n, 2)
    elif p.kind == "salu":
        if "m0" in p.wr and c.kind == "dma":
            n = max(n, 1)
    return n


VM = ("vld", "vst", "dma")
LG = ("dsr", "dsw")


def finalize(ops):
    out = []
    vm, lg, sm = [], [], []

    def youngest(q, op):
        idx = -1
        for k, o in enumerate(q):
            if o in op.need or (o.wr & (op.rd | op.wr)):
                idx = k
        return idx

    for op in ops:
        if op.kind == "wait":
            m = re.search(r"vmcnt\((\d+)\)", op.text)
            if m:
                n = int(m.group(1))
                vm[:] = vm[len(vm) - n:] if n < len(vm) else vm
                if n == 0:
                    vm.clear()
            m = re.search(r"lgkmcnt\((\d+)\)", op.text)
            if m:
                n = int(m.group(1))
                if n == 0:
                    lg.clear()
                    sm.clear()
                elif not sm:
                    lg[:] = lg[len(lg) - n:] if n < len(lg) else lg
            out.append(op)
            continue
        if op.kind == "label":
            out.append(op)
            continue
        w = []
        k = youngest(vm, op)
        if k >= 0:
            n = len(vm) - 1 - k
            assert n <= 63
            w.append(f"vmcnt({n})")
            del vm[: k + 1]
        k = youngest(lg, op)
        ks = youngest(sm, op)
        if ks >= 0 or (k >= 0 and sm):
            w.append("lgkmcnt(0)")
            lg.clear()
            sm.clear()
        elif k >= 0:
            n = min(len(lg) - 1 - k, 15)
            w.append(f"lgkmcnt({n})")
            del lg[: len(lg) - n]
        if w:
            out.append(Op("s_waitcnt " + " ".join(w)))
        dist = 0
        pad = 0
        for p in reversed(out):
            if p.kind == "label":
                continue
            if dist >= 8:
                break
            pad = max(pad, required_states(p, op) - dist)
            dist += p.states if p.kind == "nop" else 1
        if pad > 0:
            out.append(Op(f"s_nop {pad - 1}"))
        out.append(op)
        if op.kind in VM:
            vm.append(op)
            assert len(vm) <= 63, "too many vector memory operations in flight"
        elif op.kind in LG:
            lg.append(op)
        elif op.kind == "smem":
            sm.append(op)
    return out


class Gaps:
    def __init__(self, mf, cap=2):
        self.mf = mf
        self.cap = cap
        self.slots = [[] for _ in mf]
        self.load = [0.0] * len(mf)

    def place(self, item, lo, hi=None, cost=None):
        ops = item if isinstance(item, list) else [item]
        if cost is None:
            cost = len(ops)
        g = max(int(lo), 0)
        while g < len(self.mf) and self.load[g] > 0 and self.load[g] + cost > self.cap:
            g += 1
        lim = len(self.mf) if hi is None else hi
        assert g < lim, f"cannot place {ops[0].text} in [{lo},{lim}) got {g}"
        self.slots[g] += ops
        self.load[g] += cost
        for o in ops:
            o.gap = g
        return g

    def chain(self, items, lo, hi, spread=True):
        n = len(items)
        g = lo
        for k, it in enumerate(items):
            extra = 0
            if isinstance(it, tuple):
                it, fn = it
                extra = fn()
            tgt = lo + (k * (hi - lo)) // max(n, 1) if spread else lo
            g = self.place(it, max(g, tgt, extra))
        return g

    def flat(self):
        out = []
        for m, s in zip(self.mf, self.slots):
            out.append(m)
            out += s
        return out
```

```python
import sys
from asmlib import Op, Gaps, finalize

NAME = "standalone__self_sup_conv_stem_hubert__speech"
L_OUT, T_IN, TILE = 7985, 16000, 191
NWG = 252
SM = 105 * 144 + 16
LDS_PL = 9 * SM
LDS_PG = LDS_PL + 3072
LDS_TR = LDS_PG + 3072
LDS_TOTAL = 163840
WP_C = 216 * 3072
WS_STATS = 2 << 20
WS_STAMP = 4 << 20
SPIN_LIMIT = 1 << 16

class Cfg:
    D = 14
    R = 28
    upfront = [2, 6, 0, 4, 1, 5, 7, 3, 8]
    first = 9
    stamps = False

V_LANE, V_L16, V_L16H, V_DMA = 1, 2, 3, 4
V_BASE = {("E", 0): 5, ("E", 1): 6, ("O", 0): 7, ("O", 1): 8}
V_EDGE = {("E", 0): 9, ("E", 1): 10, ("O", 0): 11, ("O", 1): 12}
V_PAR = 13
V_SHW, V_SHR, V_PLW, V_PUBR, V_GR, V_PUBO, V_GO, V_TRW, V_TRR, V_O16, V_O8 = range(22, 33)
V_S1, V_S2 = 33, 36
V_T = 39
V_UP, V_SIN, V_SEDGE, V_WIN, V_SST = 40, 48, 64, 68, 120
V_Y, V_R = 68, (104, 48)
A_OLD, A_NEW, A_RING = 0, 72, 144
S_X, S_WP, S_OUT, S_STG, S_STP = 8, 12, 16, 20, 24
S_BO = 28
S_WAVE, S_C, S_NV, S_PARI, S_KK, S_GRP = 30, 31, 32, 33, 34, 35
S_KA = 36
S_KL, S_KS = 52, 80
S_MASK = 56
S_HI, S_CNT = 84, 85
S_ST = 86

def vr(a, n=4, f="v"):
    return f"{f}[{a}:{a+n-1}]"

def sr(a, n=4):
    return f"s[{a}:{a+n-1}]"

def wp_off(arr, p, j):
    return ((arr * 8 + p) * 9 + j) * 3072

WAVES = {
    0: dict(typ="a", seg1=[(4, 0, 4), (0, 0, 8), (1, 0, 8), (5, 0, 8), (6, 0, 8)],
            segc=[(4, 0, 1), (0, 0, 8), (5, 0, 8)], own=[(1, 0), (1, 5), (0, 0)]),
    1: dict(typ="a", seg1=[(4, 4, 4), (2, 0, 8), (3, 0, 8), (7, 0, 8), (8, 0, 8)],
            segc=[(4, 4, 1), (2, 0, 8), (7, 0, 8)], own=[(1, 1), (1, 2), (0, 1)]),
    2: dict(typ="b", seg1=[(4, 0, 4), (0, 0, 8), (1, 0, 8), (5, 0, 7), (6, 0, 7)],
            segc=[(4, 1, 3), (1, 0, 8), (6, 0, 8)], own=[(1, 3), (0, 2), (0, 3)]),
    3: dict(typ="b", seg1=[(4, 4, 4), (2, 0, 8), (3, 0, 8), (7, 0, 7), (8, 0, 7)],
            segc=[(4, 5, 3), (3, 0, 8), (8, 0, 8)], own=[(1, 4), (0, 4), (0, 5)]),
}
OWNER = {te: w for w, d in WAVES.items() for te in d["own"]}

XCH, XSH = {}, {}
_a = 0
for part in (1, 0):
    for n in range(3):
        for t in range(6):
            for src in range(4):
                if src == OWNER[(part, t)]:
                    continue
                if part == 1 and t == 5 and WAVES[src]["typ"] == "b":
                    XSH[(n, src)] = len(XSH) * 1536
                else:
                    XCH[(part, n, t, src)] = _a
                    _a += 1024
LDS_SH = _a + 16
assert LDS_SH + 6 * 1536 <= LDS_PL

def lds_ref(addr):
    return (V_L16, addr) if addr < 65536 else (V_L16H, addr - 65536)

def ops(text):
    return [Op(l.strip()) for l in text.strip().split("\n") if l.strip()]

def stamp(cfg, k):
    return ops(f"s_memrealtime {sr(S_ST + 2 * k, 2)}") if cfg.stamps else []

def prep_kernel():
    o = ops(f"""
    s_cmp_ge_u32 s2, 162
    s_cbranch_scc1 Lprep_end
    s_load_dwordx2 s[4:5], s[0:1], 8
    s_load_dwordx2 s[6:7], s[0:1], 56
    v_lshrrev_b32 v2, 6, v0
    v_and_b32 v1, 63, v0
    v_readfirstlane_b32 s20, v2
    s_lshl_b32 s21, s2, 2
    s_add_u32 s20, s20, s21
    s_mul_i32 s21, s20, 7282
    s_lshr_b32 s21, s21, 16
    s_mul_i32 s22, s21, 9
    s_sub_u32 s22, s20, s22
    s_mul_i32 s23, s21, 7282
    s_lshr_b32 s23, s23, 16
    s_mul_i32 s24, s23, 9
    s_sub_u32 s24, s21, s24
    s_mul_i32 s25, s22, 21846
    s_lshr_b32 s25, s25, 16
    s_mul_i32 s26, s25, 3
    s_sub_u32 s26, s22, s26
    v_and_b32 v3, 15, v1
    v_lshrrev_b32 v4, 4, v1
    v_lshrrev_b32 v5, 2, v3
    v_lshlrev_b32 v5, 2, v5
    s_cmp_eq_u32 s26, 2
    s_cselect_b32 s27, 0, -1
    s_cselect_b32 s28, 32, 0
    s_lshl_b32 s29, s26, 2
    s_and_b32 s29, s29, s27
    s_add_u32 s28, s28, s29
    s_mul_i32 s29, s25, 48
    s_add_u32 s28, s28, s29
    v_and_b32 v5, s27, v5
    v_add3_u32 v5, v5, v3, s28
    v_lshlrev_b32 v5, 1, v5
    v_mul_u32_u24 v4, 2304, v4
    v_add_u32 v5, v5, v4
    s_mul_i32 s30, s23, 165888
    s_mul_i32 s31, s24, 9216
    s_add_u32 s30, s30, s31
    s_add_u32 s31, s30, 82944
    s_mul_i32 s32, s25, {WP_C}
    s_mul_i32 s33, s21, 3072
    s_add_u32 s32, s32, s33
    s_lshl_b32 s33, s26, 10
    s_add_u32 s32, s32, s33
    s_add_u32 s33, s32, {72 * 3072}
    s_add_u32 s34, s32, {144 * 3072}
    v_lshlrev_b32 v6, 4, v1
    s_mov_b32 s35, 0x07060302
    s_mov_b32 s8, s4
    s_mov_b32 s9, s5
    s_mov_b32 s10, {4464 * 288}
    s_mov_b32 s11, 0x20000
    s_mov_b32 s12, s6
    s_mov_b32 s13, s7
    s_mov_b32 s14, {WS_STATS + 6 * 3 * 42 * 128}
    s_mov_b32 s15, 0x20000
    """)
    for r in range(16, 32):
        o += ops(f"v_mov_b32 v{r}, 0")
    for e in range(8):
        o += ops(f"buffer_load_short_d16_hi v{16+e}, v5, s[8:11], s30 offen offset:{288*e}")
    for e in range(8):
        o += ops(f"buffer_load_short_d16_hi v{24+e}, v5, s[8:11], s31 offen offset:{288*e}")
    o += ops(f"""
    s_lshl_b32 s36, s2, 12
    s_add_u32 s36, s36, {WS_STATS}
    v_lshlrev_b32 v7, 4, v0
    v_mov_b32 v8, -1
    v_mov_b32 v9, -1
    v_mov_b32 v10, -1
    v_mov_b32 v11, -1
    buffer_store_dwordx4 v[8:11], v7, s[12:15], s36 offen
    """)
    for d in range(4):
        o += ops(f"v_perm_b32 v{32+d}, v{17+2*d}, v{16+2*d}, s35")
    o += ops("buffer_store_dwordx4 v[32:35], v6, s[12:15], s32 offen")
    for d in range(4):
        o += ops(f"v_perm_b32 v{36+d}, v{25+2*d}, v{24+2*d}, s35")
    o += ops("buffer_store_dwordx4 v[36:39], v6, s[12:15], s33 offen")
    for e in range(8):
        o += ops(f"v_add_f32 v{16+e}, v{16+e}, v{24+e}")
    for d in range(4):
        o += ops(f"v_cvt_pk_bf16_f32 v{40+d}, -v{16+2*d}, -v{17+2*d}")
    o += ops("buffer_store_dwordx4 v[40:43], v6, s[12:15], s34 offen")
    o += ops("Lprep_end:\ns_endpgm")
    return finalize(o)

def dma_ops(m, q):
    return [Op(f"s_add_u32 m0, s{S_KL+q}, {m * (SM - 128)}"),
            Op(f"buffer_load_dwordx4 v{V_DMA}, {sr(S_X)}, s{S_KS+q} offen offset:{128*m} lds")]

def prologue(cfg):
    o = stamp(cfg, 0) + ops(f"""
    s_cmp_ge_u32 s2, {NWG}
    s_cbranch_scc1 Lend
    s_load_dwordx16 s[{S_KA}:{S_KA+15}], s[0:1], 0
    s_getpc_b64 s[4:5]
    Lpc:
    s_mov_b32 s6, Lend-Lpc
    s_mov_b32 s7, 0x20000
    s_lshr_b32 s3, s2, 3
    v_lshlrev_b32 v39, 5, v0
    v_add_lshl_u32 v39, v39, s3, 7
    v_lshrrev_b32 v40, 6, v0
    buffer_load_dword v116, v39, s[4:7], 0 offen
    v_readfirstlane_b32 s{S_WAVE}, v40
    v_and_b32 v{V_LANE}, 63, v0
    s_and_b32 s28, s2, 7
    s_lshl_b32 s29, s28, 5
    s_add_u32 s3, s3, s29
    s_sub_u32 s28, s28, 4
    s_max_i32 s28, s28, 0
    s_sub_u32 s3, s3, s28
    s_mul_i32 s28, s3, 21846
    s_lshr_b32 s28, s28, 16
    s_mul_i32 s29, s28, 3
    s_sub_u32 s{S_C}, s3, s29
    s_cmp_ge_u32 s28, 42
    s_cselect_b32 s3, 1, 0
    s_mul_i32 s29, s3, 42
    s_sub_u32 s{S_KK}, s28, s29
    s_mul_i32 s{S_GRP}, s3, 3
    s_add_u32 s{S_GRP}, s{S_GRP}, s{S_C}
    s_mul_i32 s28, s{S_KK}, {TILE}
    s_and_b32 s{S_PARI}, s28, 1
    s_sub_u32 s{S_NV}, {L_OUT}, s28
    s_min_u32 s{S_NV}, s{S_NV}, {TILE}
    s_lshr_b32 s29, s28, 1
    s_mul_i32 s29, s29, 1152
    s_sub_u32 s{S_X+2}, {(T_IN - 1) * 288}, s29
    s_mul_i32 s{S_X}, s3, {T_IN * 288}
    s_add_u32 s29, s29, s{S_X}
    s_mov_b32 s{S_X+3}, 0x20000
    s_mul_i32 s3, s3, {L_OUT}
    s_add_u32 s28, s28, s3
    s_mul_i32 s28, s28, 288
    v_mul_u32_u24 v40, 7282, v{V_LANE}
    v_lshrrev_b32 v40, 16, v40
    v_mul_u32_u24 v41, 9, v40
    v_sub_u32 v41, v{V_LANE}, v41
    v_min_u32 v41, 7, v41
    v_mul_u32_u24 v40, 1152, v40
    v_lshl_add_u32 v{V_DMA}, v41, 4, v40
    """)
    for q in range(4):
        o += ops(f"""
        s_lshl_b32 s3, s{S_WAVE}, 2
        s_add_u32 s3, s3, {q}
        s_min_u32 s3, s3, 14
        s_mul_i32 s{S_KL+q}, s3, 1008
        s_mul_i32 s{S_KS+q}, s3, 8064
        """)
    o += ops(f"""
    s_add_u32 s{S_X}, s{S_KA}, s29
    s_addc_u32 s{S_X+1}, s{S_KA+1}, 0
    """)
    fill = ops(f"""
    s_mul_i32 s3, s{S_C}, {WP_C}
    s_add_u32 s{S_WP}, s{S_KA+14}, s3
    s_addc_u32 s{S_WP+1}, s{S_KA+15}, 0
    s_mov_b32 s{S_WP+2}, {WP_C}
    s_mov_b32 s{S_WP+3}, 0x20000
    s_mul_i32 s3, s{S_C}, 96
    s_add_u32 s28, s28, s3
    s_add_u32 s{S_OUT}, s{S_KA+10}, s28
    s_addc_u32 s{S_OUT+1}, s{S_KA+11}, 0
    s_mul_i32 s28, s{S_NV}, 288
    s_sub_u32 s{S_OUT+2}, s28, s3
    s_mov_b32 s{S_OUT+3}, 0x20000
    s_mul_i32 s3, s{S_GRP}, {3 * 42 * 128}
    s_add_u32 s3, s3, {WS_STATS}
    s_add_u32 s{S_STP}, s{S_KA+14}, s3
    s_addc_u32 s{S_STP+1}, s{S_KA+15}, 0
    s_mov_b32 s{S_STP+2}, {3 * 42 * 128}
    s_mov_b32 s{S_STP+3}, 0x20000
    s_mov_b32 s{S_STG}, s{S_STP}
    s_mov_b32 s{S_STG+1}, s{S_STP+1}
    s_mov_b32 s{S_STG+2}, {42 * 128}
    s_mov_b32 s{S_STG+3}, 0x20000
    s_mov_b32 s{S_HI}, 0xffff0000
    v_lshlrev_b32 v{V_L16}, 4, v{V_LANE}
    """)
    planes = {}
    for m in cfg.upfront:
        planes[m] = []
        for q in range(4):
            a, b = dma_ops(m, q)
            o += [a, b]
            planes[m].append(b)
    o += fill
    o += ops(f"""
    s_cmp_eq_u32 s{S_WAVE}, 1
    s_cbranch_scc1 Lw1
    s_cmp_eq_u32 s{S_WAVE}, 2
    s_cbranch_scc1 Lw2
    s_cmp_eq_u32 s{S_WAVE}, 3
    s_cbranch_scc1 Lw3
    """)
    return o, planes

def setup(w):
    d = WAVES[w]
    o = ops(f"""
    v_and_b32 v40, 15, v{V_LANE}
    v_lshrrev_b32 v41, 4, v{V_LANE}
    v_lshrrev_b32 v42, 2, v40
    v_lshl_add_u32 v42, v42, 2, v40
    s_mul_i32 s3, s{S_C}, 48
    v_add_lshl_u32 v42, v42, s3, 1
    v_add_lshl_u32 v43, v40, s3, 1
    """)
    for k in range(9):
        o += ops(f"v_mov_b32 v{V_PAR+k}, 0")
    for k in range(3):
        o += ops(f"""
        global_load_short_d16_hi v{V_PAR+3*k}, v42, s[{S_KA+4+2*k}:{S_KA+5+2*k}]
        global_load_short_d16_hi v{V_PAR+3*k+1}, v42, s[{S_KA+4+2*k}:{S_KA+5+2*k}] offset:8
        global_load_short_d16_hi v{V_PAR+3*k+2}, v43, s[{S_KA+4+2*k}:{S_KA+5+2*k}] offset:64
        """)
    even = {0: 0, 1: 64}
    odd = {0: 4 * SM + 64, 1: 5 * SM}
    o += ops(f"""
    v_add_u32 v{V_L16H}, 0x10000, v{V_L16}
    v_mul_u32_u24 v44, 864, v40
    v_lshl_add_u32 v44, v41, 4, v44
    v_min_u32 v45, 6, v40
    v_mul_u32_u24 v45, 144, v45
    v_lshl_add_u32 v45, v41, 4, v45
    v_add_u32 v45, {96 * 144}, v45
    s_cmp_eq_u32 s{S_PARI}, 0
    """)
    for jp in (0, 1):
        for arr, (e0, e1) in (("E", (even[jp], odd[jp])), ("O", (odd[jp], even[jp] + 144))):
            o += ops(f"""
            s_mov_b32 s29, {e1}
            s_cselect_b32 s3, {e0}, s29
            v_add_u32 v{V_BASE[(arr, jp)]}, s3, v44
            v_add_u32 v{V_EDGE[(arr, jp)]}, s3, v45
            """)
    o += ops(f"""
    v_mul_u32_u24 v44, 96, v40
    v_lshl_add_u32 v44, v41, 4, v44
    v_add_u32 v{V_SHR}, {LDS_SH}, v44
    v_add_u32 v{V_SHW}, {LDS_SH - 4}, v44
    v_lshrrev_b32 v44, 5, v{V_LANE}
    v_lshlrev_b32 v44, 9, v44
    v_lshl_add_u32 v44, v40, 5, v44
    v_and_b32 v45, 1, v41
    v_lshl_add_u32 v44, v45, 2, v44
    v_add_u32 v{V_PLW}, {LDS_PL + 8 * w}, v44
    v_and_b32 v44, 1, v{V_LANE}
    v_lshlrev_b32 v44, 9, v44
    v_bfe_u32 v45, v{V_LANE}, 1, 4
    v_lshl_add_u32 v44, v45, 5, v44
    v_add_u32 v{V_PUBR}, {LDS_PL}, v44
    v_lshlrev_b32 v44, 5, v40
    v_add_u32 v{V_GR}, {LDS_PG}, v44
    v_lshrrev_b32 v44, 5, v{V_LANE}
    v_lshlrev_b32 v44, 20, v44
    v_lshl_add_u32 v44, v{V_LANE}, 2, v44
    s_lshl_b32 s3, s{S_KK}, 7
    v_add_u32 v{V_PUBO}, s3, v44
    v_lshlrev_b32 v44, 7, v41
    v_lshl_add_u32 v44, v40, 3, v44
    v_add_u32 v{V_GO}, {12 * w * 128}, v44
    v_lshlrev_b32 v44, 5, v40
    v_lshl_add_u32 v44, v41, 3, v44
    v_add_u32 v{V_TRW}, {LDS_TR + 4608 * w}, v44
    v_lshlrev_b32 v44, 3, v{V_LANE}
    v_add_u32 v{V_TRR}, {LDS_TR + 4608 * w}, v44
    v_mul_u32_u24 v44, 3456, v40
    v_lshl_add_u32 v{V_O16}, v41, 4, v44
    v_lshl_add_u32 v{V_O8}, v41, 3, v44
    v_mul_u32_u24 v44, 48, v41
    v_sub_u32 v44, s{S_NV}, v44
    """)
    for k, (e, t) in enumerate(d["own"]):
        for r in range(4):
            m = S_MASK + 2 * (4 * k + r)
            o += ops(f"v_cmp_lt_i32 s[{m}:{m+1}], {12 * r + 2 * t + e}, v44")
    for n in range(3):
        o += ops(f"v_mov_b32 v{V_S1+n}, 0\nv_mov_b32 v{V_S2+n}, 0")
    return o

def frag_read(dst, arr, j, sig, edge=False):
    base = (V_EDGE if edge else V_BASE)[(arr, j & 1)]
    return Op(f"ds_read_b128 {vr(dst)}, v{base} offset:{(j >> 1) * SM + (0 if edge else sig * 144)}")

def s_unit(dst, buf):
    e, o_ = V_SIN + 8 * buf, V_SIN + 8 * buf + 4
    r = []
    for h in range(2):
        a, b = [], []
        for d in (2 * h, 2 * h + 1):
            t = V_UP + 4 * (d & 1)
            a += [f"v_lshlrev_b32 v{t}, 16, v{e+d}", f"v_and_b32 v{t+1}, s{S_HI}, v{e+d}",
                  f"v_lshlrev_b32 v{t+2}, 16, v{o_+d}", f"v_and_b32 v{t+3}, s{S_HI}, v{o_+d}",
                  f"v_add_f32 v{t}, v{t}, v{t+2}", f"v_add_f32 v{t+1}, v{t+1}, v{t+3}"]
            b += [f"v_cvt_pk_bf16_f32 v{dst+d}, v{t}, v{t+1}"]
        r += a + b
    return [Op(x) for x in r]

def s_shift(dst, src, lane):
    return ([Op(f"v_mov_b32_dpp v{dst+d}, v{V_SEDGE+d} row_shr:{15-lane} row_mask:0xf bank_mask:0xf") for d in range(4)]
            + [Op(f"v_mov_b32_dpp v{dst+d}, v{src+d} row_shl:1 row_mask:0xf bank_mask:0xf") for d in range(4)])

def acc(base, n, t):
    return base + 4 * (6 * n + t)

def dump_tile(w, part, n, t):
    typ = WAVES[w]["typ"]
    if part == 0:
        a = acc(A_NEW, n, t)
    elif typ == "a":
        a = acc(A_OLD, n, t)
    elif t < 5:
        a = acc(A_OLD, n, t + 1)
    else:
        a = acc(A_OLD, n, 0)
        off = XSH[(n, w)]
        return [Op(f"ds_write_b32 v{V_SHW}, a{a+r} offset:{off + 4*r}") for r in range(4)]
    b, off = lds_ref(XCH[(part, n, t, w)])
    return [Op(f"ds_write_b128 v{b}, {vr(a, 4, 'a')} offset:{off}")]

def reduce_tile(w, n, k, rset):
    part, t = WAVES[w]["own"][k]
    typ = WAVES[w]["typ"]
    R = V_R[rset]
    rd = []
    for src in range(4):
        if src == w:
            continue
        dst = R + 4 * len(rd)
        if (part, n, t, src) in XCH:
            b, off = lds_ref(XCH[(part, n, t, src)])
        else:
            b, off = V_SHR, XSH[(n, src)]
        rd.append(Op(f"ds_read_b128 {vr(dst)}, v{b} offset:{off}"))
    a = acc(A_NEW, n, t) if part == 0 else acc(A_OLD, n, t if typ == "a" else t + 1)
    y = V_Y + 4 * (3 * n + k)
    v = [f"v_accvgpr_read_b32 v{y+r}, a{a+r}" for r in range(4)]
    if part == 1:
        v += [f"v_add_f32 v{y+r}, v{y+r}, v{R+r}" for r in range(4)]
        v += [f"v_add_f32 v{R+4+r}, v{R+4+r}, v{R+8+r}" for r in range(4)]
        v += [f"v_add_f32 v{y+r}, v{y+r}, v{R+4+r}" for r in range(4)]
    else:
        v += [f"v_sub_f32 v{y+r}, -v{y+r}, v{R+r}" for r in range(4)]
        v += [f"v_add_f32 v{R+4+r}, v{R+4+r}, v{R+8+r}" for r in range(4)]
        v += [f"v_sub_f32 v{y+r}, v{y+r}, v{R+4+r}" for r in range(4)]
    for r in range(4):
        m = S_MASK + 2 * (4 * k + r)
        v += [f"v_cndmask_b32 v{y+r}, 0, v{y+r}, s[{m}:{m+1}]"]
    for r in range(4):
        v += [f"v_add_f32 v{V_S1+n}, v{V_S1+n}, v{y+r}", f"v_fmac_f32 v{V_S2+n}, v{y+r}, v{y+r}"]
    return rd, [Op(x) for x in v]

def partial_out(a, b, off):
    return ops(f"""
    v_permlane32_swap_b32 v{a}, v{b}
    v_add_f32 v{a}, v{a}, v{b}
    ds_write_b32 v{V_PLW}, v{a} offset:{off}
    """)

def publish(n):
    t = 60
    return ops(f"""
    ds_read_b128 {vr(t)}, v{V_PUBR} offset:{1024*n}
    ds_read_b128 {vr(t+4)}, v{V_PUBR} offset:{1024*n+16}
    """), ops(f"""
    v_add_f32 v{t}, v{t}, v{t+1}
    v_add_f32 v{t+2}, v{t+2}, v{t+3}
    v_add_f32 v{t+4}, v{t+4}, v{t+5}
    v_add_f32 v{t+6}, v{t+6}, v{t+7}
    v_add_f32 v{t}, v{t}, v{t+2}
    v_add_f32 v{t+4}, v{t+4}, v{t+6}
    v_add_f32 v{t}, v{t}, v{t+4}
    v_min_u32 v{t}, -2, v{t}
    s_mov_b32 s3, {n * 42 * 128}
    buffer_store_dword v{t}, v{V_PUBO}, {sr(S_STP)}, s3 offen sc1
    """)

K1 = -2.0 * 1.4426950408889634 * 0.7978845608028654
K2 = K1 * 0.044715

def f32(x):
    import struct
    return "0x%08x" % struct.unpack("<I", struct.pack("<f", x))[0]

def gather(w, n):
    g = 120
    o = ops(f"s_mov_b32 s{S_CNT}, {SPIN_LIMIT}\nLg{w}_{n}:")
    for k in range(3):
        o += ops(f"buffer_load_dwordx2 {vr(g+2*k, 2)}, v{V_GO}, {sr(S_STG)}, 0 offen offset:{512*k} sc1")
    o += ops(f"""
    s_waitcnt vmcnt(0)
    v_max3_u32 v{V_T}, v{g}, v{g+1}, v{g+2}
    v_max3_u32 v{V_T}, v{V_T}, v{g+3}, v{g+4}
    v_max_u32 v{V_T}, v{V_T}, v{g+5}
    v_cmp_eq_u32 vcc, -1, v{V_T}
    s_sub_u32 s{S_CNT}, s{S_CNT}, 1
    s_cbranch_scc1 Lh{w}_{n}
    s_cbranch_vccnz Lg{w}_{n}
    Lh{w}_{n}:
    s_add_u32 s{S_STG}, s{S_STG}, {42*128}
    s_addc_u32 s{S_STG+1}, s{S_STG+1}, 0
    v_add_f32 v{g}, v{g}, v{g+2}
    v_add_f32 v{g+1}, v{g+1}, v{g+3}
    v_add_f32 v{g}, v{g}, v{g+4}
    v_add_f32 v{g+1}, v{g+1}, v{g+5}
    """)
    p = partial_out(g, g + 1, 3072 + 1024 * n)
    return o + p, p[-1]

def consts(n, A):
    g = 128
    o = []
    for k in range(4):
        o += ops(f"ds_read_b128 {vr(g+4*k)}, v{V_GR} offset:{1024*n + 512*(k>>1) + 16*(k&1)}")
    for h in (0, 8):
        o += ops(f"""
        v_pk_add_f32 {vr(g+h,2)}, {vr(g+h,2)}, {vr(g+h+2,2)}
        v_pk_add_f32 {vr(g+h+4,2)}, {vr(g+h+4,2)}, {vr(g+h+6,2)}
        v_pk_add_f32 {vr(g+h,2)}, {vr(g+h,2)}, {vr(g+h+4,2)}
        v_add_f32 v{g+h}, v{g+h}, v{g+h+1}
        """)
    bias, gam, bet = V_PAR + n, V_PAR + 3 + n, V_PAR + 6 + n
    o += ops(f"""
    v_mul_f32 v{g}, {f32(1.0 / L_OUT)}, v{g}
    v_mul_f32 v{g+8}, {f32(1.0 / L_OUT)}, v{g+8}
    v_fma_f32 v{g+8}, -v{g}, v{g}, v{g+8}
    v_max_f32 v{g+8}, 0, v{g+8}
    v_add_f32 v{g+8}, {f32(1e-5)}, v{g+8}
    v_rsq_f32 v{g+8}, v{g+8}
    v_add_f32 v{g}, v{g}, v{bias}
    v_sub_f32 v{g}, v{bias}, v{g}
    v_mul_f32 v{A}, v{g+8}, v{gam}
    v_fma_f32 v{A+1}, v{g}, v{A}, v{bet}
    """)
    return o

V_K = 118

def gelu(n, A):
    y0 = V_Y + 12 * n
    t0 = 144
    pairs = range(6)
    o = []
    for p in pairs:
        o += ops(f"v_pk_fma_f32 {vr(y0+2*p,2)}, {vr(y0+2*p,2)}, {vr(A,2)}, {vr(A,2)} op_sel:[0,0,1] op_sel_hi:[1,0,1]")
    for p in pairs:
        o += ops(f"v_pk_mul_f32 {vr(t0+2*p,2)}, {vr(y0+2*p,2)}, {vr(y0+2*p,2)}")
    for p in pairs:
        o += ops(f"v_pk_fma_f32 {vr(t0+2*p,2)}, {vr(t0+2*p,2)}, {vr(V_K,2)}, {vr(V_K,2)} op_sel:[0,0,1] op_sel_hi:[1,0,1]")
    for p in pairs:
        o += ops(f"v_pk_mul_f32 {vr(t0+2*p,2)}, {vr(t0+2*p,2)}, {vr(y0+2*p,2)}")
    for r in range(12):
        o += ops(f"v_exp_f32 v{t0+r}, v{t0+r}")
    for p in pairs:
        o += ops(f"v_pk_add_f32 {vr(t0+2*p,2)}, {vr(t0+2*p,2)}, 1.0 op_sel_hi:[1,0]")
    for r in range(12):
        o += ops(f"v_rcp_f32 v{t0+r}, v{t0+r}")
    for p in pairs:
        o += ops(f"v_pk_mul_f32 {vr(y0+2*p,2)}, {vr(y0+2*p,2)}, {vr(t0+2*p,2)}")
    wr = []
    for k in range(3):
        o += ops(f"""
        v_cvt_pk_bf16_f32 v{t0+2*k}, v{y0+4*k}, v{y0+4*k+1}
        v_cvt_pk_bf16_f32 v{t0+2*k+1}, v{y0+4*k+2}, v{y0+4*k+3}
        ds_write_b64 v{V_TRW}, {vr(t0+2*k,2)} offset:{512*(3*n+k)}
        """)
        wr.append(o[-1])
    return o, wr

def stream(cfg, w, planes):
    d = WAVES[w]
    typ = d["typ"]
    arr1, warr = ("O", 0) if typ == "a" else ("E", 1)
    mf, bseq = [], []
    win_first, win_last, win = {}, {}, []
    seen = set()
    for (j, p0, np_) in d["seg1"]:
        f0 = len(win)
        win += [(j, s) for s in range(p0, p0 + np_ + 5)]
        for p in range(p0, p0 + np_):
            for n in range(3):
                b = A_RING + 4 * (len(bseq) % cfg.R)
                bseq.append((wp_off(warr, p, j), n))
                for t in range(6):
                    f = f0 + t + p - p0
                    win_first.setdefault(f, len(mf))
                    win_last[f] = len(mf)
                    c = acc(A_OLD, n, t)
                    cin = vr(c, 4, "a") if (n, t) in seen else "0"
                    seen.add((n, t))
                    mf.append(Op(f"v_mfma_f32_16x16x32_bf16 {vr(c,4,'a')}, {vr(V_WIN + 4*(f % 12))}, {vr(b,4,'a')}, {cin}"))
    P1 = len(mf)
    sreg = {}
    for (j, p0, np_) in d["segc"]:
        for s in range(p0, p0 + np_ + 5):
            sreg[(j, s)] = V_SST + 4 * len(sreg)
    pass_end = []
    for n in range(3):
        first = True
        for (j, p0, np_) in d["segc"]:
            for p in range(p0, p0 + np_):
                b = A_RING + 4 * (len(bseq) % cfg.R)
                bseq.append((wp_off(2, p, j), n))
                for t in range(6):
                    c = acc(A_NEW, n, t)
                    cin = acc(A_OLD, n, t) if first else c
                    mf.append(Op(f"v_mfma_f32_16x16x32_bf16 {vr(c,4,'a')}, {vr(sreg[(j, t+p)])}, {vr(b,4,'a')}, {vr(cin,4,'a')}"))
                first = False
        pass_end.append(len(mf))
    assert len(mf) == 954 and len(bseq) == 159

    cur = [None]
    def bload(f):
        off, n = bseq[f]
        r = []
        if cur[0] != off:
            r.append(Op(f"s_mov_b32 s{S_BO}, {off}"))
            cur[0] = off
        r.append(Op(f"buffer_load_dwordx4 {vr(A_RING + 4*(f % cfg.R),4,'a')}, v{V_L16}, {sr(S_WP)}, s{S_BO} offen offset:{1024*n}"))
        return r

    pre = ops(f"Lw{w}:")
    for f in range(cfg.D):
        pre += bload(f)
    pre += setup(w)
    need = [x for m in cfg.upfront[:cfg.first] for x in planes[m]]
    pre.append(Op("s_barrier", need=need))
    for f in range(7):
        pre.append(frag_read(V_WIN + 4 * f, arr1, *win[f]))
    pre += stamp(cfg, 1)

    G = Gaps(mf)
    B1, B2, B3, B4, B5, B6 = 626, 712, 784, 832, 884, 930
    bars = {k: Op("s_barrier") for k in (B1, B2, B3, B4, B5, B6)}
    for k, b in bars.items():
        G.place(b, k, k + 1, cost=2)
    for f in range(cfg.D, 159):
        G.place(bload(f), 6 * (f - cfg.D) + 1, 6 * (f - cfg.D) + 6)
    xreads = []
    g = 0
    for f in range(7, len(win)):
        lo = max(win_first[f] - 40, win_last[f - 12] if f >= 12 else 0, g + 2)
        op = frag_read(V_WIN + 4 * (f % 12), arr1, *win[f])
        g = G.place(op, lo, win_first[f] - 7)
        xreads.append(op)
    units = []
    for (j, p0, np_) in d["segc"]:
        if np_ == 8:
            units.append(("u", j, 0, True, V_SEDGE))
            for s in range(6):
                units.append(("u", j, s, False, sreg[(j, s)]))
            for s in range(7):
                units.append(("s", sreg[(j, s + 6)], sreg[(j, s)], s))
        else:
            for s in range(p0, p0 + np_ + 5):
                units.append(("u", j, s, False, sreg[(j, s)]))
    us = [u for u in units if u[0] == "u"]
    rds = [[frag_read(V_SIN + 8 * (k & 1), "E", u[1], u[2], u[3]),
            frag_read(V_SIN + 8 * (k & 1) + 4, "O", u[1], u[2], u[3])] for k, u in enumerate(us)]
    items = [rds[0][0], rds[0][1]]
    k = 0
    for u in units:
        if u[0] == "u":
            body = s_unit(u[4], k & 1)
            first = body[0]
            items.append((first, (lambda r=rds[k][1]: r.gap + 6)))
            items += body[1:3]
            if k + 1 < len(us):
                items += rds[k + 1]
            items += body[3:]
            k += 1
        else:
            items += s_shift(u[1], u[2], u[3])
    g = G.chain(items, 2, min(P1, B1) - 30)
    assert g < P1 - 3, g
    xreads += [x for r in rds for x in r]
    assert max(x.gap for x in xreads) < B1
    bars[B1].need = xreads

    def dumps(part, ns, lo, hi, bar):
        it = []
        for n in ns:
            for t in range(6):
                if OWNER[(part, t)] != w:
                    it += dump_tile(w, part, n, t)
        g = G.chain(it, lo, hi)
        assert g < bar, (g, bar)
        bars[bar].need += it

    rs = [0]
    def reduces(lst, lo, hi, extra=()):
        parts = []
        for n, k in lst:
            parts.append(reduce_tile(w, n, k, rs[0] & 1))
            rs[0] += 1
        it = list(parts[0][0])
        for q, (rd, v) in enumerate(parts):
            it += v[:4]
            it.append((v[4], (lambda r=rd[-1]: r.gap + 5)))
            if q + 1 < len(parts):
                it += parts[q + 1][0]
            it += v[5:]
        it += list(extra)
        return G.chain(it, lo, hi)

    k1 = [k for k, (e, t) in enumerate(d["own"]) if e == 1]
    k0 = [k for k, (e, t) in enumerate(d["own"]) if e == 0]
    dumps(1, range(3), max(B1 + 1, P1 + 6), B2 - 8, B2)
    dumps(0, [0], pass_end[0] + 6, B3 - 6, B3)
    dumps(0, [1], pass_end[1] + 6, B5 - 6, B5)
    y1 = [(n, k) for n in range(3) for k in k1]
    g = reduces(y1[:3], B2 + 1, B3 - 6)
    assert g < B3 + 2, g
    po = partial_out(V_S1, V_S2, 0)
    g = reduces([(0, k) for k in k0], max(g, B3 + 1), B3 + 2, po)
    assert g < B4, g
    bars[B4].need.append(po[-1])
    if w == 2:
        rd, v = publish(0)
        G.chain(rd + [(v[0], lambda: rd[1].gap + 5)] + v[1:-2] + [v[-2:]], B4 + 1, B4 + 2)
    if y1[3:]:
        g = reduces(y1[3:5], g, B5 - 10)
        assert g < B5 + 2, g
    po = partial_out(V_S1 + 1, V_S2 + 1, 1024)
    g = reduces([(1, k) for k in k0], max(g, B5 + 1), B5 + 2, po)
    assert g < B6, g
    bars[B6].need.append(po[-1])
    if w == 3:
        rd, v = publish(1)
        G.chain(rd + [(v[0], lambda: rd[1].gap + 5)] + v[1:-2] + [v[-2:]], B6 + 1, B6 + 2)
    if y1[5:]:
        g = reduces(y1[5:], g, 945)

    tail = stamp(cfg, 2)
    it = []
    for t in range(6):
        if OWNER[(0, t)] != w:
            it += dump_tile(w, 0, 2, t)
    tail += it + [Op("s_barrier", need=it)]
    parts = [reduce_tile(w, 2, k, q & 1) for q, k in enumerate(k0)]
    for rd, v in parts:
        tail += rd
    for rd, v in parts:
        tail += v
    po = partial_out(V_S1 + 2, V_S2 + 2, 2048)
    tail += po + [Op("s_barrier", need=[po[-1]])]
    if w == 0:
        rd, v = publish(2)
        tail += rd + v
    tail += stamp(cfg, 3)
    tail += ops(f"v_mov_b32 v{V_K}, {f32(K2)}\nv_mov_b32 v{V_K+1}, {f32(K1)}")
    o0, w0 = gather(w, 0)
    o1, w1 = gather(w, 1)
    tail += o0 + o1 + [Op("s_barrier", need=[w0, w1])]
    tail += stamp(cfg, 4)
    tail += consts(0, 160) + consts(1, 162)
    g0, wr0 = gelu(0, 160)
    g1, wr1 = gelu(1, 162)
    tail += g0 + g1
    for k in range(3):
        tail += [Op(f"ds_read_b64_tr_b16 {vr(164+4*k,2)}, v{V_TRR} offset:{512*k}"),
                 Op(f"ds_read_b64_tr_b16 {vr(166+4*k,2)}, v{V_TRR} offset:{512*(3+k)}")]
    o2, w2 = gather(w, 2)
    st = []
    for k, (e, t) in enumerate(d["own"]):
        st += ops(f"buffer_store_dwordx4 {vr(164+4*k)}, v{V_O16}, {sr(S_OUT)}, 0 offen offset:{(2*t+e)*288}")
    tail += o2 + st + [Op("s_barrier", need=[w2])]
    tail += stamp(cfg, 5)
    tail += consts(2, 160)
    g2, wr2 = gelu(2, 160)
    tail += g2
    for k in range(3):
        tail += [Op(f"ds_read_b64_tr_b16 {vr(180+2*k,2)}, v{V_TRR} offset:{512*(6+k)}")]
    for k, (e, t) in enumerate(d["own"]):
        tail += ops(f"buffer_store_dwordx2 {vr(180+2*k,2)}, v{V_O8}, {sr(S_OUT)}, 0 offen offset:{(2*t+e)*288+64}")
    if cfg.stamps:
        tail += ops("s_waitcnt vmcnt(0)") + stamp(cfg, 6) + ops(f"""
        s_waitcnt lgkmcnt(0)
        s_mov_b32 s4, s{S_KA+14}
        s_mov_b32 s5, s{S_KA+15}
        s_mov_b32 s6, {WS_STAMP + (1 << 20)}
        s_mov_b32 s7, 0x20000
        s_lshl_b32 s3, s2, 8
        s_add_u32 s3, s3, {WS_STAMP + 64 * w}
        v_mov_b32 v127, 0
        """)
        for k in range(7):
            tail += ops(f"v_mov_b32 v{120+k}, s{S_ST+2*k}")
        tail += ops(f"""
        v_lshlrev_b32 v40, 24, v{V_LANE}
        buffer_store_dwordx4 v[120:123], v40, s[4:7], s3 offen
        buffer_store_dwordx4 v[124:127], v40, s[4:7], s3 offen offset:16
        """)
    tail += ops("s_endpgm")
    return pre + G.flat() + tail

KD = """.amdhsa_kernel {name}
  .amdhsa_next_free_vgpr {vgpr}
  .amdhsa_next_free_sgpr 102
  .amdhsa_accum_offset {acc}
  .amdhsa_group_segment_fixed_size 0
  .amdhsa_kernarg_size 64
  .amdhsa_user_sgpr_count 2
  .amdhsa_user_sgpr_kernarg_segment_ptr 1
  .amdhsa_system_sgpr_workgroup_id_x 1
  .amdhsa_float_denorm_mode_32 3
.end_amdhsa_kernel
"""

def text(lst):
    return "\n".join(o.text if o.kind == "label" else "    " + o.text for o in lst) + "\n"

def build(cfg):
    head = open(f"cdna_kernels/{NAME}.s.ref").read().split("; Override launch")[0]
    s = head
    s += "; @launch kernel=prep_kernel grid=(162,1,1) block=(256,1,1) lds=0\n"
    s += f"; @launch kernel={NAME}_kernel grid=({NWG},1,1) block=(256,1,1) lds={LDS_TOTAL}\n"
    s += '.amdgcn_target "amdgcn-amd-amdhsa--gfx950"\n.text\n'
    s += ".globl prep_kernel\n.p2align 8\n.type prep_kernel,@function\nprep_kernel:\n" + text(prep_kernel())
    s += f".globl {NAME}_kernel\n.p2align 8\n.type {NAME}_kernel,@function\n{NAME}_kernel:\n"
    ptxt = None
    for w in range(4):
        pro, planes = prologue(cfg)
        full = finalize(pro + stream(cfg, w, planes))
        cut = next(i for i, o in enumerate(full) if o.text == f"Lw{w}:")
        if ptxt is None:
            ptxt = text(full[:cut])
            s += ptxt
        assert ptxt == text(full[:cut])
        if w:
            s += ".p2align 6\n"
        s += text(full[cut:])
    s += "Lend:\n    s_endpgm\n"
    s += '.section .rodata,"a"\n.p2align 6\n' + KD.format(name="prep_kernel", vgpr=48, acc=48)
    s += ".p2align 6\n" + KD.format(name=f"{NAME}_kernel", vgpr=512, acc=256)
    return s

if __name__ == "__main__":
    cfg = Cfg()
    out = f"cdna_kernels/{NAME}.s"
    for a in sys.argv[1:]:
        k, v = a.split("=", 1)
        if k == "out":
            out = v
        else:
            setattr(cfg, k, eval(v))
    open(out, "w").write(build(cfg))
    print("wrote", out)
```
